```python
import torch

def _softmax(x, axis=-1):
    return torch.softmax(x, dim=axis)
def _gelu(x):
    return torch.nn.functional.gelu(x, approximate="tanh")
def _silu(x):
    return torch.nn.functional.silu(x)
def _sigmoid(x):
    return torch.sigmoid(x)
def _layernorm(x, axis=-1, eps=1e-5):
    m = x.mean(dim=axis, keepdim=True)
    v = x.var(dim=axis, keepdim=True, unbiased=False)
    return (x - m) / torch.sqrt(v + eps)
def _scatter_add(tgt, idx, src, axis=0):
    return tgt.clone().index_add_(axis, idx, src)
def _segment_sum(src, seg, n):
    out = torch.zeros((n,) + src.shape[1:], dtype=src.dtype)
    return out.index_add_(0, seg, src)
def _pad(x, pw):
    flat = tuple(v for pair in reversed(pw) for v in pair)
    return torch.nn.functional.pad(x, flat)

kernel_name = 'standalone__mha_block_cached__near_ridge'

def setup_inputs():

    _w = (lambda a: (lambda t: t.to(torch.bfloat16) if t.is_floating_point() else t)(torch.as_tensor(a)))
    B, Sq, D = 8, 96, 512
    H, Sk, Dh = 32, 1024, 128
    return {
        "x": _w((lambda *s: torch.randn(*s, dtype=torch.bfloat16) * 0.8)(B, Sq, D)),
        "k_cache": _w((lambda *s: torch.randn(*s, dtype=torch.bfloat16) * 0.8)(B, H, Sk, Dh)),
        "v_cache": _w((lambda *s: torch.randn(*s, dtype=torch.bfloat16) * 0.05)(B, H, Sk, Dh)),
        "wq": _w((lambda *s: torch.randn(*s, dtype=torch.bfloat16) * 0.8)(D, H * Dh) * (D ** -0.5)),
        "wo": _w((lambda *s: torch.randn(*s, dtype=torch.bfloat16) * 0.05)(H * Dh, D) * ((H * Dh) ** -0.5)),
    }

def reference(x, k_cache, v_cache, wq, wo):
    B, Sq, D = x.shape
    H, Dh = 32, 128
    q = (lambda x, *d: x.permute(*d))((x @ wq).reshape(B, Sq, H, Dh), 0, 2, 1, 3)
    scores = torch.einsum("bhqd,bhkd->bhqk", q, k_cache) * (Dh ** -0.5)
    p = _softmax(scores, axis=-1)
    o = torch.einsum("bhqk,bhkd->bhqd", p, v_cache)
    return (lambda x, *d: x.permute(*d))(o, 0, 2, 1, 3).reshape(B, Sq, H * Dh) @ wo
```

```python
import re

TRANS = ("v_exp_f32", "v_log_f32", "v_rcp_f32", "v_rsq_f32", "v_sqrt_f32", "v_sin_f32", "v_cos_f32")

def parse_regs(tok):
    tok = tok.strip()
    tok = tok.lstrip("-")
    m = re.fullmatch(r"abs\((.*)\)", tok)
    if m: tok = m.group(1)
    m = re.fullmatch(r"([vas])\[(\d+):(\d+)\]", tok)
    if m: return [(m.group(1), i) for i in range(int(m.group(2)), int(m.group(3)) + 1)]
    m = re.fullmatch(r"([vas])(\d+)", tok)
    if m: return [(m.group(1), int(m.group(2)))]
    if tok == "vcc": return [("s", "vcc")]
    if tok == "m0": return [("s", "m0")]
    if tok == "exec": return [("s", "exec")]
    return []

class Ins:
    __slots__ = ("text", "op", "kind", "dst", "src", "srcC", "passes", "states")
    def __init__(self, text):
        self.text = text
        t = text.split(";")[0].strip()
        parts = t.split(None, 1)
        self.op = op = parts[0]
        rest = parts[1] if len(parts) > 1 else ""
        ops = [o.strip() for o in re.split(r",\s*(?![^\[]*\])", rest)] if rest else []
        if ops:
            last = ops[-1].split()
            mods = last[1:]
            ops[-1] = last[0] if last else ""
        else:
            mods = []
        self.dst = []; self.src = []; self.srcC = []; self.passes = 0; self.states = 1
        R = lambda i: parse_regs(ops[i]) if i < len(ops) else []
        if op.startswith("v_mfma"):
            self.kind = "mfma"
            self.dst = R(0); self.src = R(1) + R(2); self.srcC = R(3)
            self.passes = 8 if "32x32" in op else 4
        elif op.startswith("v_cmp"):
            self.kind = "valu"; self.dst = R(0); self.src = R(1) + R(2)
        elif op.startswith("v_permlane32_swap") or op.startswith("v_permlane16_swap"):
            self.kind = "valu"; self.dst = R(0) + R(1); self.src = R(0) + R(1)
        elif op.startswith("v_readfirstlane") or op.startswith("v_readlane"):
            self.kind = "valu"; self.dst = R(0); self.src = R(1)
        elif op.startswith("v_"):
            self.kind = "valu"; self.dst = R(0)
            for i in range(1, len(ops)): self.src += R(i)
            if op.startswith("v_fmac") : self.src += R(0)
            if op.startswith("v_cndmask") and len(ops) == 3: self.src += [("s", "vcc")]
        elif op.startswith("ds_read"):
            self.kind = "ds"; self.dst = R(0); self.src = R(1)
        elif op.startswith("ds_write"):
            self.kind = "ds"
            for i in range(len(ops)): self.src += R(i)
        elif op.startswith("buffer_load"):
            self.kind = "vmem"
            if "lds" in mods:
                for i in range(len(ops)): self.src += R(i)
                self.src += [("s", "m0")]
            else:
                self.dst = R(0)
                for i in range(1, len(ops)): self.src += R(i)
        elif op.startswith("buffer_store") or op.startswith("buffer_atomic"):
            self.kind = "vmem"
            for i in range(len(ops)): self.src += R(i)
            if op.startswith("buffer_atomic") and "sc0" in mods: self.dst = R(0)
        elif op == "s_nop":
            self.kind = "salu"; self.states = int(ops[0], 0) + 1
        elif op.startswith("s_"):
            self.kind = "salu"
            if op.startswith(("s_cmp", "s_cbranch", "s_branch", "s_waitcnt", "s_barrier", "s_endpgm", "s_setprio", "s_sleep", "s_bitcmp", "s_setpc")):
                for i in range(len(ops)): self.src += R(i)
            else:
                self.dst = R(0)
                for i in range(1, len(ops)): self.src += R(i)
        else:
            raise ValueError("unknown op " + text)

class Asm:
    def __init__(self):
        self.lines = []
        self.hist = []
        self.lds_q = []
        self.vm_n = 0
        self.vm_done = 0
        self.vm_regs = {}
        self.errors = []
        self.nbytes = 0
    def raw(self, s): self.lines.append(s)
    def label(self, l): self.lines.append(l + ":")
    def comment(self, c): self.lines.append("; " + c)
    def reset_stream(self):
        self.hist = []; self.lds_q = []; self.vm_n = 0; self.vm_done = 0; self.vm_regs = {}
    def wait_lgkm(self, n):
        n = min(n, 15)
        self._emit(f"s_waitcnt lgkmcnt({n})")
        if n < len(self.lds_q): self.lds_q = self.lds_q[len(self.lds_q) - n:] if n else []
    def wait_vm_idx(self, idx):
        if idx < self.vm_done: return
        n = self.vm_n - (idx + 1)
        n = min(n, 63)
        self._emit(f"s_waitcnt vmcnt({n})")
        self.vm_done = self.vm_n - n
    def wait_vm_cap(self, cap):
        if self.vm_n - self.vm_done > cap:
            self._emit(f"s_waitcnt vmcnt({cap})")
            self.vm_done = self.vm_n - cap
    def _auto_wait(self, ins):
        touched = set(ins.src + ins.srcC + ins.dst)
        last = -1
        for i, d in enumerate(self.lds_q):
            if d & touched: last = i
        if last >= 0: self.wait_lgkm(len(self.lds_q) - 1 - last)
        mx = -1
        for r in touched:
            if r in self.vm_regs: mx = max(mx, self.vm_regs[r])
        if mx >= 0: self.wait_vm_idx(mx)
    def need(self, ins):
        miss = 0; dist = 0
        rd = set(ins.src); rc = set(ins.srcC); wr = set(ins.dst)
        for p in reversed(self.hist):
            req = 0
            pd = set(p.dst)
            if p.kind == "valu":
                vd = {r for r in pd if r[0] in "va"}; sd = {r for r in pd if r[0] == "s"}
                if ins.kind == "mfma" and vd & (rd | rc): req = max(req, 2)
                if ins.op.startswith("v_permlane") and vd & rd: req = max(req, 2)
                if ins.op.startswith(("v_readfirstlane", "v_readlane")) and vd & rd: req = max(req, 1)
                if p.op.startswith(TRANS) and ins.kind in ("valu",) and not ins.op.startswith(TRANS) and vd & rd: req = max(req, 1)
                if p.op.startswith(TRANS) and ins.kind in ("ds", "vmem") and vd & rd: req = max(req, 1)
                if ins.kind == "vmem" and sd & rd: req = max(req, 5)
                if ins.kind == "valu" and sd & rd: req = max(req, 2)
                if ins.kind == "salu" and sd & rd and not ins.op.startswith("s_cbranch"): req = max(req, 1)
            if p.kind == "mfma":
                big = {8: 12, 4: 8}[p.passes]
                if ins.kind == "mfma":
                    if pd & rd: req = max(req, big)
                    if pd & rc and not (pd == rc and p.passes == ins.passes): req = max(req, {8: 10, 4: 6}[p.passes])
                    if pd & wr and not (pd == wr and p.passes == ins.passes): req = max(req, big)
                elif ins.kind in ("valu", "ds", "vmem"):
                    if pd & (rd | wr): req = max(req, big)
                    if ins.kind == "valu" and set(p.srcC) & wr: req = max(req, {8: 7, 4: 3}[p.passes])
            if p.kind == "salu" and ("s", "m0") in pd and ins.kind == "vmem" and ("s", "m0") in rd: req = max(req, 1)
            if p.kind == "vmem" and p.op.startswith("buffer_store_dwordx4") and ins.kind in ("valu", "mfma", "ds", "vmem"):
                data = set(parse_regs(p.text.split(None, 1)[1].split(",")[0]))
                if data & wr: req = max(req, 2)
            miss = max(miss, req - dist)
            dist += p.states
            if dist > 24: break
        return miss
    def _emit(self, text):
        ins = Ins(text)
        self.lines.append("    " + text)
        self.hist.append(ins)
        if len(self.hist) > 64: self.hist = self.hist[-40:]
        return ins
    def e(self, text, pad=True):
        ins = Ins(text)
        self._auto_wait(ins)
        m = self.need(ins)
        if m > 0:
            if pad:
                while m > 0:
                    k = min(m, 16); self._emit(f"s_nop {k-1}"); m -= k
            else:
                self.errors.append(text)
        self._emit(text)
        if ins.kind == "ds":
            self.lds_q.append(set(ins.dst))
        if ins.kind == "vmem":
            for r in ins.dst: self.vm_regs[r] = self.vm_n
            self.vm_n += 1
            return self.vm_n - 1
        return None
    def text(self): return "\n".join(self.lines) + "\n"
```

```python
import sys, math
from asmlib import Asm

NAME = "standalone__mha_block_cached__near_ridge"
HDR = open("standalone__mha_block_cached__near_ridge.s.ref").read().split("; Override launch")[0] \
    if __import__("os").path.exists("standalone__mha_block_cached__near_ridge.s.ref") else ""

KB = 1024
KRING = 0
WRING = 64 * KB
VRING = 96 * KB
VPOS = [5, 6, 7, 1, 2, 3, 4, 0]
QBUF = [48 * KB, 76 * KB, 108 * KB]
def kslot(n): return KRING + (n % 8) * 8 * KB
def vslot(n): return VRING + VPOS[n % 8] * 8 * KB
FLAG_OFF = 8 * 1024 * 1024
FLAG_STRIDE = 4096 + 256
WS_SIZE = 16 * 1024 * 1024
STAMP_OFF = 0x10000000

sWAVE, sH, sB, sXCD, sJ, sROT = "s3", "s4", "s5", "s6", "s7", "s8"
sC = "s10"; sTC = "s11"; sRET = "s[12:13]"
sT0, sT1, sT2 = "s9", "s14", "s15"
srdK, srdV, srdX, srdWQ, srdWO, srdOUT, srdDBG, srdWS, srdCODE = 32, 36, 40, 44, 48, 52, 56, 60, 64
def srd(n): return f"s[{n}:{n+3}]"
sSOFF = "s68"; sWBASE = "s69"; sOST = "s70"; sFLAGP = "s71"; sFLAGC = "s72"; sOLD = "s73"; sCNT = "s74"
sMASK = "s[76:77]"; sNEED = "s[78:79]"; sEX = "s[80:81]"
sCQ = "s75"; sCX = "s82"
STAMP0 = 84

vO = 128; vQ = 192; vS = [224, 240]; vK = 64; vV = 96; vP = 56
vKA = 40; vVA = 48; vWA = 52; vWO = 53
vM, vMC, vTHR, vL0, vL1, vT, vT2, vT3 = 32, 33, 34, 35, 36, 37, 38, 39
vLANE = 1
def V(b, n=1): return f"v{b}" if n == 1 else f"v[{b}:{b+n-1}]"
def A_(b, n=1): return f"a{b}" if n == 1 else f"a[{b}:{b+n-1}]"

def f32bits(x):
    import struct
    return struct.unpack("<I", struct.pack("<f", x))[0]

def gen(path, stamps=False, LA=None, cap=59, mapping="B", kvflags="nt", T=8.0, stop=None):
    a = Asm(); e = a.e
    nst = [0]
    def stamp(k):
        if stamps: a._emit(f"s_memrealtime s[{STAMP0+2*k}:{STAMP0+2*k+1}]")
    if LA is None: LA = lambda m: 7 if m < 16 else 5
    a.raw(HDR.rstrip())
    a.raw("; @launch grid=(256,1,1) block=(256,1,1) lds=163840")
    a.raw('.amdgcn_target "amdgcn-amd-amdhsa--gfx950"')
    a.raw(".text"); a.raw(f".globl {NAME}_kernel"); a.raw(".p2align 8"); a.raw(f".type {NAME}_kernel,@function")
    a.label(f"{NAME}_kernel")
    e("s_load_dwordx16 s[16:31], s[0:1], 0")
    e("s_cmp_ge_u32 s2, 256"); e("s_cbranch_scc1 L_end")
    stamp(0)
    e(f"s_getpc_b64 s[{srdCODE}:{srdCODE+1}]")
    e("v_lshrrev_b32 v2, 6, v0")
    e(f"v_and_b32 v{vLANE}, 63, v0")
    e(f"v_readfirstlane_b32 {sWAVE}, v2")
    e(f"s_and_b32 {sXCD}, s2, 7"); e(f"s_lshr_b32 {sJ}, s2, 3")
    if mapping == "B":
        e(f"s_and_b32 {sT0}, {sJ}, 3"); e(f"s_lshl_b32 {sH}, {sXCD}, 2"); e(f"s_add_u32 {sH}, {sH}, {sT0}")
        e(f"s_lshr_b32 {sB}, {sJ}, 2")
        e(f"s_lshl_b32 {sROT}, {sT0}, 1"); e(f"s_add_u32 {sROT}, {sROT}, {sB}")
    else:
        e(f"s_mov_b32 {sH}, {sJ}"); e(f"s_mov_b32 {sB}, {sXCD}"); e(f"s_add_u32 {sROT}, {sH}, {sB}")
    e(f"v_lshrrev_b32 v2, 4, v{vLANE}"); e(f"v_and_b32 v3, 15, v{vLANE}")
    e("v_lshlrev_b32 v4, 2, v2"); e("v_xor_b32 v4, v4, v3"); e("v_lshlrev_b32 v4, 4, v4")
    e("v_xor_b32 v5, v2, v3"); e("v_lshlrev_b32 v5, 4, v5")
    e("v_lshl_or_b32 v8, v2, 8, v5"); e("v_xor_b32 v9, 64, v8"); e("v_xor_b32 v10, 0x80, v8"); e("v_xor_b32 v11, 0xc0, v8")
    e("v_lshl_or_b32 v12, v2, 8, v4")
    e(f"s_lshl_b32 {sT0}, {sB}, 5"); e(f"s_add_u32 {sT0}, {sT0}, {sH}"); e(f"s_lshl_b32 {sT0}, {sT0}, 18")
    for r in (srdK, srdV, srdX, srdWQ, srdWS, srdCODE): e(f"s_mov_b32 s{r+3}, 0x20000")
    e(f"s_mov_b32 s{srdK+2}, 0x40000"); e(f"s_mov_b32 s{srdV+2}, 0x40000")
    a._emit("s_waitcnt lgkmcnt(0)")
    e(f"s_add_u32 s{srdK}, s18, {sT0}"); e(f"s_addc_u32 s{srdK+1}, s19, 0")
    e(f"s_add_u32 s{srdV}, s20, {sT0}"); e(f"s_addc_u32 s{srdV+1}, s21, 0")
    e(f"s_cmp_eq_u32 {sWAVE}, 3"); e("s_cbranch_scc1 L_loader")

    kvf = (" " + kvflags) if kvflags else ""
    def dma_tile(kind, m0expr, soffexpr):
        last = None
        for g in range(2):
            a.wait_vm_cap(cap)
            m0expr(g); soffexpr(g)
            for i in range(4):
                vo = f"v{8+i}" if kind == "K" else "v12"
                off = f" offset:{i*1024}" if i else ""
                last = e(f"buffer_load_dwordx4 {vo}, {srd(srdK if kind=='K' else srdV)}, {sSOFF} offen{off}{kvf} lds")
        return last

    def common_setup():
        e(f"s_and_b32 {sT0}, {sXCD}, 1"); e(f"s_lshl_b32 {sT0}, {sT0}, 3"); e(f"s_and_b32 {sT1}, {sJ}, 7"); e(f"s_add_u32 {sT0}, {sT0}, {sT1}")
        e(f"s_lshl_b32 {sT0}, {sT0}, 6")
        e(f"s_lshr_b32 {sT1}, {sXCD}, 1"); e(f"s_lshl_b32 {sT1}, {sT1}, 2"); e(f"s_lshr_b32 {sT2}, {sJ}, 3"); e(f"s_add_u32 {sT1}, {sT1}, {sT2}")
        e(f"s_lshl_b32 {sT2}, {sWAVE}, 20"); e(f"s_add_u32 {sT2}, {sT2}, {sT0}")
        e(f"s_add_u32 s{srdWO}, s24, {sT2}"); e(f"s_addc_u32 s{srdWO+1}, s25, 0")
        e(f"s_sub_u32 s{srdWO+2}, 0x100000, {sT0}"); e(f"s_mov_b32 s{srdWO+3}, 0x20000")
        e(f"s_mul_i32 {sT2}, {sT1}, {48*1024}"); e(f"s_add_u32 {sT2}, {sT2}, {sT0}")
        e(f"s_add_u32 s{srdOUT}, s26, {sT2}"); e(f"s_addc_u32 s{srdOUT+1}, s27, 0")
        e(f"s_sub_u32 s{srdOUT+2}, {48*1024}, {sT0}"); e(f"s_mov_b32 s{srdOUT+3}, 0x20000")
        e(f"s_mul_i32 {sOLD}, {sT1}, {3*32*4096}"); e(f"s_lshl_b32 {sT2}, {sWAVE}, 15"); e(f"s_add_u32 {sOLD}, {sOLD}, {sT2}")
        e(f"s_lshr_b32 {sT2}, {sT1}, 1"); e(f"s_lshl_b32 {sT2}, {sT2}, 2"); e(f"s_add_u32 {sT2}, {sT2}, {sWAVE}")
        e(f"s_mul_i32 {sFLAGC}, {sT2}, {FLAG_STRIDE}"); e(f"s_add_u32 {sFLAGC}, {sFLAGC}, {FLAG_OFF}")
        e(f"s_and_b32 {sT2}, {sT1}, 1"); e(f"s_lshl_b32 s78, 0x33333333, {sT2}"); e("s_mov_b32 s79, 0")
        e(f"s_lshl_b32 {sWBASE}, {sWAVE}, 13"); e(f"s_add_u32 {sWBASE}, {sWBASE}, {WRING}")
        e(f"v_lshrrev_b32 v6, 4, v{vLANE}"); e("v_lshlrev_b32 v6, 9, v6")
        e(f"v_and_b32 v7, 15, v{vLANE}"); e("v_lshl_or_b32 v6, v7, 4, v6")
        e(f"v_add_u32 v{vWA}, {sWBASE}, v6")
        e(f"v_lshrrev_b32 v6, 2, v{vLANE}"); e("v_lshlrev_b32 v6, 10, v6"); e(f"v_and_b32 v7, 3, v{vLANE}")
        e(f"v_lshl_or_b32 v{vWO}, v7, 4, v6"); e(f"v_add_u32 v{vWO+1}, {16384-1024}, v{vWO}")

    def ws_srd():
        e(f"s_mov_b32 s{srdWS}, s30"); e(f"s_mov_b32 s{srdWS+1}, s31"); e(f"s_mov_b32 s{srdWS+2}, {WS_SIZE}")
        e(f"s_lshl_b32 {sT0}, {sB}, 2"); e(f"s_lshr_b32 {sT1}, {sH}, 3"); e(f"s_add_u32 {sT0}, {sT0}, {sT1}")
        e(f"s_mul_i32 {sFLAGP}, {sT0}, {FLAG_STRIDE}"); e(f"s_and_b32 {sT1}, {sH}, 7"); e(f"s_lshl_b32 {sT1}, {sT1}, 4")
        e(f"s_add_u32 {sFLAGP}, {sFLAGP}, {sT1}"); e(f"s_add_u32 {sFLAGP}, {sFLAGP}, {FLAG_OFF}")

    wo_idx = {}
    def wo_dma(i):
        out = []
        out.append(f"s_add_u32 m0, {sWBASE}, {(i%4)*2048}")
        out.append(f"s_mov_b32 {sSOFF}, {i*32768}")
        out.append(("wo", i, f"buffer_load_dwordx4 v{vWO}, {srd(srdWO)}, {sSOFF} offen lds"))
        out.append(("wo", i, f"buffer_load_dwordx4 v{vWO+1}, {srd(srdWO)}, {sSOFF} offen offset:1024 lds"))
        return out
    def wo_read(i):
        out = [("wowait", i)]
        for u in range(2):
            for aa in range(2):
                out.append(f"ds_read_b64_tr_b16 {A_(8*i+4*u+2*aa,2)}, v{vWA} offset:{(i%4)*2048 + aa*256 + u*8}")
        return out
    def put(x):
        if isinstance(x, tuple):
            if x[0] == "wo": wo_idx[x[1]] = e(x[2])
            elif x[0] == "wowait": a.wait_vm_idx(wo_idx[x[1]])
            elif x[0] == "call": x[1]()
        else: e(x)

    e(f"s_lshl_b32 {sT1}, {sWAVE}, 13")
    init_idx = []
    for kind, base_t, m0b in (("K", 0, kslot(0)), ("V", 0, vslot(0)), ("K", 3, kslot(3))):
        init_idx.append(dma_tile(kind, lambda g: e(f"s_add_u32 m0, {sT1}, {m0b + g*4096}"),
                                 lambda g: e(f"s_add_u32 {sSOFF}, {sT1}, {base_t*8192 + g*4096}")))
    e("s_branch L_compute")
    comp_state = (a.vm_n, a.vm_done)

    a.label("L_loader"); a.reset_stream()
    e(f"s_mul_i32 {sT0}, {sB}, 98304"); e(f"s_add_u32 s{srdX}, s16, {sT0}"); e(f"s_addc_u32 s{srdX+1}, s17, 0"); e(f"s_mov_b32 s{srdX+2}, 98304")
    e(f"s_lshl_b32 {sT0}, {sH}, 8"); e(f"s_add_u32 s{srdWQ}, s22, {sT0}"); e(f"s_addc_u32 s{srdWQ+1}, s23, 0"); e(f"s_sub_u32 s{srdWQ+2}, 0x400000, {sT0}")
    e(f"s_mov_b32 s{srdCODE+2}, L_code_end-{NAME}_kernel-64")
    e(f"v_lshlrev_b32 v6, 7, v{vLANE}"); e(f"s_and_b32 {sT0}, {sJ}, 15"); e(f"s_lshl_b32 {sT0}, {sT0}, 13")
    e(f"buffer_load_dword v31, v6, {srd(srdCODE)}, {sT0} offen")
    e("v_lshl_or_b32 v16, v2, 13, v4")
    for i in range(1, 4): e(f"v_add_u32 v{16+i}, {i*(32768-1024)}, v16")
    e(f"v_lshrrev_b32 v6, 3, v{vLANE}"); e(f"v_and_b32 v7, 7, v{vLANE}"); e("v_xor_b32 v7, v7, v2"); e("v_lshlrev_b32 v7, 4, v7")
    e("v_lshl_or_b32 v20, v6, 10, v7"); e("v_xor_b32 v21, 64, v20")
    e(f"v_add_u32 v22, {2*(8192-1024)}, v20"); e(f"v_add_u32 v23, {3*(8192-1024)}, v21"); e(f"v_add_u32 v21, {8192-1024}, v21")
    qidx = {}
    def q_stage(s):
        buf = QBUF[s % 3]
        e(f"s_add_u32 {sT0}, {sROT}, {s}"); e(f"s_and_b32 {sT0}, {sT0}, 7")
        e(f"s_lshl_b32 {sCQ}, {sT0}, 19"); e(f"s_lshl_b32 {sCX}, {sT0}, 7")
        for g in range(3):
            a.wait_vm_cap(cap)
            e(f"s_mov_b32 m0, {buf + 16*KB + g*4096}"); e(f"s_add_u32 {sSOFF}, {sCX}, {g*32768}")
            for i in range(4):
                e(f"buffer_load_dwordx4 v{20+i}, {srd(srdX)}, {sSOFF} offen" + (f" offset:{i*1024}" if i else "") + " lds")
        for g in range(4):
            a.wait_vm_cap(cap)
            e(f"s_mov_b32 m0, {buf + g*4096}"); e(f"s_add_u32 {sSOFF}, {sCQ}, {g*131072}")
            for i in range(4):
                qidx[s] = e(f"buffer_load_dwordx4 v{16+i}, {srd(srdWQ)}, {sSOFF} offen" + (f" offset:{i*1024}" if i else "") + " lds")
    q_stage(0); q_stage(1)
    ws_srd()
    for i in range(4): e(f"v_mov_b32 v{24+i}, 0")
    e(f"s_mov_b64 {sEX}, exec"); e("s_mov_b64 exec, 1")
    zidx = e(f"buffer_store_dwordx4 v[24:27], off, {srd(srdWS)}, {sFLAGP} sc1")
    e(f"s_mov_b64 exec, {sEX}")
    e(f"s_mov_b32 s{srdDBG}, s28"); e(f"s_mov_b32 s{srdDBG+1}, s29"); e(f"s_mov_b32 s{srdDBG+2}, 256"); e(f"s_mov_b32 s{srdDBG+3}, 0x20000")
    common_setup()
    q_stage(2)
    kidx = {}; vidx = {}
    def ld_tile(kind, n):
        slot = kslot(n) if kind == "K" else vslot(n)
        r = dma_tile(kind, lambda g: e(f"s_mov_b32 m0, {slot + g*4096}"), lambda g: e(f"s_mov_b32 {sSOFF}, {n*8192 + g*4096}"))
        (kidx if kind == "K" else vidx)[n] = r
    for s in range(8):
        a.wait_vm_idx(qidx[s])
        if s == 0: stamp(1)
        e("s_barrier")
        if 1 <= s <= 5: q_stage(s + 2)
        if s == 3:
            a.wait_vm_idx(zidx)
            e("v_mov_b32 v24, 1"); e("s_mov_b64 exec, 1")
            e(f"buffer_atomic_add v24, off, {srd(srdDBG)}, 0 sc1")
            e(f"s_mov_b64 exec, {sEX}")
        if s == 6:
            for n in (3, 4, 5, 6): ld_tile("V", n)
        if s == 7:
            ld_tile("K", 6); ld_tile("K", 7)
    issuedK = 8; issuedV = 7
    wo_idx.clear()
    for n in range(32):
        need = []
        if n in vidx: need.append(vidx[n])
        if n + 2 in kidx: need.append(kidx[n + 2])
        assert n < 3 or n in vidx
        assert n + 2 < 6 or n + 2 >= 32 or (n + 2) in kidx
        if need: a.wait_vm_idx(max(need))
        if a.lds_q: a.wait_lgkm(0)
        e("s_barrier")
        if n >= 3:
            for x in wo_read(n - 3): put(x)
        while True:
            prog = False
            m = min(issuedV, issuedK - 2)
            if issuedK - 2 <= issuedV and issuedK < 32 and n >= 1 and issuedK - 2 - LA(issuedK - 2) <= n:
                ld_tile("K", issuedK); issuedK += 1; prog = True
            elif issuedV < 32 and issuedV - LA(issuedV) <= n and (issuedV <= issuedK - 2 or issuedK >= 32 or n == 0):
                ld_tile("V", issuedV); issuedV += 1; prog = True
            if not prog: break
        a.wait_vm_cap(cap)
        for x in wo_dma(n): put(x)
        if n == 28:
            e(f"s_mov_b32 {sCNT}, 0")
            a.label("L_initpoll")
            e(f"buffer_load_dword v24, off, {srd(srdDBG)}, 0 sc1")
            a._emit("s_waitcnt vmcnt(0)"); a.vm_done = a.vm_n
            e(f"v_readfirstlane_b32 {sT0}, v24")
            e(f"s_add_u32 {sCNT}, {sCNT}, 1")
            e(f"s_cmp_ge_u32 {sCNT}, 0x10000"); e("s_cbranch_scc1 L_initdone")
            e(f"s_cmp_lt_u32 {sT0}, 256"); e("s_cbranch_scc1 L_initpoll")
            a.label("L_initdone")
    assert issuedK == 32 and issuedV == 32
    stamp(4)
    a._emit("s_waitcnt vmcnt(0) lgkmcnt(0)")
    stamp(5)
    e("s_branch L_phase2")

    a.raw(".p2align 6")
    a.label("L_compute"); a.reset_stream(); a.vm_n, a.vm_done = comp_state
    wo_idx.clear()
    ws_srd(); common_setup()
    c = math.log2(math.e) / math.sqrt(128.0)
    e(f"s_mov_b32 {sC}, {f32bits(c):#x}"); e(f"s_mov_b32 {sTC}, {f32bits(T / c):#x}")
    e(f"s_mul_i32 {sOST}, {sB}, 6"); e(f"s_lshl_b32 {sT0}, {sWAVE}, 1"); e(f"s_add_u32 {sOST}, {sOST}, {sT0}")
    e(f"s_lshl_b32 {sOST}, {sOST}, 5"); e(f"s_add_u32 {sOST}, {sOST}, {sH}"); e(f"s_lshl_b32 {sOST}, {sOST}, 12")
    e(f"s_lshl_b32 {sT0}, {sWAVE}, 2"); e(f"s_add_u32 {sFLAGP}, {sFLAGP}, {sT0}")
    e(f"v_lshrrev_b32 v4, 5, v{vLANE}")
    e(f"v_and_b32 v5, 31, v{vLANE}")
    e("v_xor_b32 v6, v4, v3"); e("v_lshlrev_b32 v6, 4, v6"); e(f"v_lshl_or_b32 v{vKA}, v5, 8, v6")
    for j in range(1, 8): e(f"v_xor_b32 v{vKA+j}, {32*j}, v{vKA}")
    e("v_and_b32 v6, 1, v2"); e("v_lshlrev_b32 v6, 1, v6"); e(f"v_and_b32 v7, 1, v{vLANE}"); e("v_or_b32 v6, v6, v7")
    e("v_and_b32 v7, 12, v3"); e("v_or_b32 v6, v6, v7"); e("v_lshlrev_b32 v6, 4, v6")
    e(f"v_and_b32 v13, 2, v{vLANE}"); e("v_lshl_or_b32 v6, v13, 2, v6")
    e("v_lshl_or_b32 v6, v7, 6, v6")
    e("v_lshl_or_b32 v13, v4, 10, v6")
    e(f"v_add_u32 v{vVA}, {VRING}, v13")
    for t in range(1, 4): e(f"v_xor_b32 v{vVA+t}, {64*t}, v{vVA}")
    e("v_lshl_or_b32 v7, v4, 11, v6")
    e(f"v_add_u32 v8, {QBUF[0]}, v7"); e(f"v_add_u32 v12, {QBUF[2]}, v7")
    for t in range(1, 4): e(f"v_xor_b32 v{8+t}, {64*t}, v8"); e(f"v_xor_b32 v{12+t}, {64*t}, v12")
    e("v_bfe_u32 v6, v5, 1, 3"); e("v_xor_b32 v6, v6, v4"); e("v_lshlrev_b32 v6, 4, v6"); e("v_lshl_or_b32 v6, v5, 7, v6")
    e(f"s_lshl_b32 {sT0}, {sWAVE}, 12"); e(f"s_add_u32 {sT1}, {sT0}, {QBUF[0]+16*KB}"); e(f"s_add_u32 {sT0}, {sT0}, {QBUF[2]+16*KB}")
    e(f"v_add_u32 v16, {sT1}, v6"); e(f"v_add_u32 v20, {sT0}, v6")
    for k in range(1, 4): e(f"v_xor_b32 v{16+k}, {32*k}, v16"); e(f"v_xor_b32 v{20+k}, {32*k}, v20")
    e("v_and_b32 v6, 1, v2"); e("v_lshlrev_b32 v6, 17, v6"); e("v_lshl_or_b32 v6, v4, 8, v6"); e("v_lshl_or_b32 v30, v3, 4, v6")
    e(f"v_mov_b32 v{vM}, 0xff800000"); e(f"v_mov_b32 v{vL0}, 0"); e(f"v_mov_b32 v{vL1}, 0")

    def q_reads(g):
        s, ks = divmod(g, 4); bi = s % 3
        wb, xb, add = (12, 20, 0) if bi == 2 else (8, 16, QBUF[bi] - QBUF[0])
        fa = vK + 16 * (g % 2); fx = vS[g % 2]
        out = [f"ds_read_b128 {V(fx,4)}, v{xb+ks} offset:{add}"]
        for t in range(4):
            for aa in range(2):
                out.append(f"ds_read_b64_tr_b16 {V(fa+4*t+2*aa,2)}, v{wb+t} offset:{add + ks*4096 + aa*1024}")
        return out
    def q_mfma(g, t):
        fa = vK + 16 * (g % 2); fx = vS[g % 2]
        cc = "0" if g == 0 else V(vO + 16 * t, 16)
        return f"v_mfma_f32_32x32x16_bf16 {V(vO+16*t,16)}, {V(fa+4*t,4)}, {V(fx,4)}, {cc}"
    for g in range(33):
        if g < 32 and g % 4 == 0:
            if a.lds_q: a.wait_lgkm(0)
            e("s_barrier")
            if g == 0: stamp(1)
        rd = q_reads(g) if g < 32 else []
        if g == 32:
            a.wait_lgkm(0); a.wait_vm_idx(init_idx[1]); e("s_barrier"); stamp(2)
            rd = [f"ds_read_b128 {V(vV+4*j,4)}, v{vKA+j} offset:{kslot(0)}" for j in range(8)]
        if g == 0:
            for x in rd: e(x)
            continue
        if a.lds_q and g < 32: a.wait_lgkm(0)
        for t in range(4):
            e(q_mfma(g - 1, t))
            for x in rd[3 * t: 3 * t + 3]: e(x)
    for j in range(8): e(f"ds_read_b128 {V(vK+4*j,4)}, v{vKA+j} offset:{kslot(1)}")
    for j in range(8):
        for k in range(4):
            r = vO + 8 * j + 2 * k
            e(f"v_cvt_pk_bf16_f32 v{vQ+4*j+k}, v{r}, v{r+1}")
    for j in range(8):
        cc = "0" if j == 0 else V(vS[0], 16)
        e(f"v_mfma_f32_32x32x16_bf16 {V(vS[0],16)}, {V(vV+4*j,4)}, {V(vQ+4*j,4)}, {cc}")
        for k in range(8): e(f"v_mov_b32 v{vO+8*j+k}, 0")
    def max_ops(sb):
        out = [f"v_max3_f32 v{vT}, v{sb}, v{sb+1}, v{sb+2}"]
        for k in range(3, 15, 2): out.append(f"v_max3_f32 v{vT}, v{vT}, v{sb+k}, v{sb+k+1}")
        out.append(f"v_max_f32 v{vT}, v{vT}, v{sb+15}")
        return out
    for x in max_ops(vS[0]): e(x)
    e(f"s_call_b64 {sRET}, L_rescale")

    def exp_ops(sb):
        out = []
        for k in range(16 + 3):
            if k < 16: out.append(f"v_fma_f32 v{sb+k}, v{sb+k}, {sC}, -v{vMC}")
            if 0 <= k - 1 < 16: out.append(f"v_exp_f32 v{sb+k-1}, v{sb+k-1}")
            if 0 <= k - 3 < 16:
                i = k - 3
                l = vL0 if i % 2 == 0 else vL1
                out.append(f"v_add_f32 v{l}, v{l}, v{sb+i}")
                if i % 2 == 1: out.append(f"v_cvt_pk_bf16_f32 v{vP+i//2}, v{sb+i-1}, v{sb+i}")
        return out
    for n in range(32):
        a.comment(f"---- iteration {n}")
        cur, nxt = vS[n % 2], vS[(n + 1) % 2]
        M = []
        if n < 31:
            for j in range(8):
                cc = "0" if j == 0 else V(nxt, 16)
                M.append(f"v_mfma_f32_32x32x16_bf16 {V(nxt,16)}, {V(vK+4*j,4)}, {V(vQ+4*j,4)}, {cc}")
        else:
            M += [None] * 8
        for jj in range(2):
            for t in range(4):
                M.append(f"v_mfma_f32_32x32x16_bf16 {V(vO+16*t,16)}, {V(vV+16*jj+4*t,4)}, {V(vP+4*jj,4)}, {V(vO+16*t,16)}")
        vr = [f"ds_read_b64_tr_b16 {V(vV+16*jj+4*t+2*aa,2)}, v{vVA+t} offset:{vslot(n)-VRING + jj*4096 + aa*2048}"
              for jj in range(2) for t in range(4) for aa in range(2)]
        kr = [f"ds_read_b128 {V(vK+4*j,4)}, v{vKA+j} offset:{kslot(n+2)}" for j in range(8)] if n + 2 < 32 else []
        ex = exp_ops(cur)
        gaps = [[] for _ in range(16)]
        if n == 31:
            if a.lds_q: a.wait_lgkm(0)
            for x in wo_read(n - 3): put(x)
            for x in wo_dma(n): put(x)
            for x in ex: e(x)
            if a.lds_q: a.wait_lgkm(0)
            e("s_barrier"); stamp(3)
            for x in vr: e(x)
            for m in M[8:]: e(m)
            break
        if n > 0:
            if n == 1: a.wait_vm_idx(init_idx[2])
            if a.lds_q: a.wait_lgkm(0)
            e("s_barrier")
        per = (len(ex) + 11) // 12
        for i, x in enumerate(ex): gaps[min(i // per, 11)].append(x)
        for i, x in enumerate(vr): gaps[i // 2 if i < 8 else 4 + (i - 8) * 5 // 8].insert(0, x)
        for i, x in enumerate(kr): gaps[8 + i * 5 // 8].insert(0, x)
        mx = max_ops(nxt)
        for i, x in enumerate(mx): gaps[12 + i // 3].append(x)
        if n >= 3: gaps[12] = wo_read(n - 3) + gaps[12]
        gaps[14] += wo_dma(n)
        gaps[15] += [f"v_cmp_gt_f32 vcc, v{vT}, v{vTHR}"]
        for g in range(16):
            e(M[g])
            for x in gaps[g]: put(x)
        e(f"s_cbranch_vccz L_skip{n}")
        e(f"s_call_b64 {sRET}, L_rescale")
        a.label(f"L_skip{n}")
    e(f"v_add_f32 v{vL0}, v{vL0}, v{vL1}"); e(f"v_mov_b32 v{vL1}, v{vL0}")
    e(f"v_permlane32_swap_b32 v{vL0}, v{vL1}")
    e(f"v_add_f32 v{vL0}, v{vL0}, v{vL1}")
    e(f"v_rcp_f32 v{vL0}, v{vL0}")
    for j in range(8):
        for k in range(8): e(f"v_mul_f32 v{vO+8*j+k}, v{vO+8*j+k}, v{vL0}")
        for k in range(4): e(f"v_cvt_pk_bf16_f32 v{vK+4*j+k}, v{vO+8*j+2*k}, v{vO+8*j+2*k+1}")
        e(f"buffer_store_dwordx4 {V(vK+4*j,4)}, v30, {srd(srdWS)}, {sOST} offen offset:{j*512} sc1")
    stamp(4)
    e("v_mov_b32 v24, 1")
    a._emit("s_waitcnt vmcnt(0)"); a.vm_done = a.vm_n
    e(f"s_mov_b64 {sEX}, exec"); e("s_mov_b64 exec, 1")
    e(f"buffer_store_dword v24, off, {srd(srdWS)}, {sFLAGP} sc1")
    e(f"s_mov_b64 exec, {sEX}")
    stamp(5)

    a.label("L_phase2"); a.reset_stream()
    for i in (29, 30, 31):
        for x in wo_read(i)[1:]: e(x)
    e(f"v_lshlrev_b32 v2, 2, v{vLANE}"); e(f"v_lshlrev_b32 v3, 4, v{vLANE}")
    e(f"s_mov_b32 {sCNT}, 0")
    a.label("L_poll")
    e(f"buffer_load_dword v4, v2, {srd(srdWS)}, {sFLAGC} offen sc1")
    e(f"s_add_u32 {sCNT}, {sCNT}, 1")
    e(f"v_cmp_eq_u32 {sMASK}, 1, v4")
    e(f"s_cmp_ge_u32 {sCNT}, 0x10000"); e("s_cbranch_scc1 L_polldone")
    e(f"s_and_b64 {sMASK}, {sMASK}, {sNEED}")
    e(f"s_cmp_eq_u64 {sMASK}, {sNEED}"); e("s_cbranch_scc0 L_poll")
    a.label("L_polldone")
    stamp(6)
    ACC = 8; FR = 32; NFR = 56
    loads = [(hh, t, qt) for hh in range(8) for qt in range(3) for t in range(4)]
    freg = {}
    def issue(i):
        hh, t, qt = loads[i]
        if t == 0: e(f"s_add_u32 {sSOFF}, {sOLD}, {qt*131072 + hh*4096}")
        r = FR + 4 * (i % NFR); freg[loads[i]] = r
        e(f"buffer_load_dwordx4 {V(r,4)}, v3, {srd(srdWS)}, {sSOFF} offen" + (f" offset:{t*1024}" if t else "") + " sc1")
    for i in range(NFR): issue(i)
    for i, (hh, t, qt) in enumerate(loads):
        ks = hh * 4 + t
        for u in range(2):
            d = V(ACC + 8 * qt + 4 * u, 4)
            cc = "0" if ks == 0 else d
            e(f"v_mfma_f32_16x16x32_bf16 {d}, {A_(8*ks+4*u,4)}, {V(freg[loads[i]],4)}, {cc}")
        if i % 4 == 3 and i - 3 + NFR < len(loads):
            for k in range(4): issue(i - 3 + NFR + k)
    e(f"s_mul_i32 {sT0}, {sWAVE}, 6144"); e(f"v_add_u32 v4, {sT0}, v3")
    for k in range(6): e(f"ds_write_b128 v4, {V(ACC+4*k,4)} offset:{k*1024}")
    a.wait_lgkm(0); e("s_barrier")
    e(f"s_cmp_eq_u32 {sWAVE}, 3"); e("s_cbranch_scc1 L_fin")
    e(f"s_lshl_b32 {sT0}, {sWAVE}, 11"); e(f"v_add_u32 v4, {sT0}, v3")
    for w in range(4):
        for u in range(2): e(f"ds_read_b128 {V(32+8*w+4*u,4)}, v4 offset:{w*6144+u*1024}")
    e(f"v_and_b32 v5, 15, v{vLANE}"); e(f"v_lshrrev_b32 v6, 4, v{vLANE}"); e("v_lshlrev_b32 v6, 4, v6"); e("v_lshl_or_b32 v5, v5, 10, v6")
    e(f"s_lshl_b32 {sT0}, {sWAVE}, 14")
    for k in range(8): e(f"v_add_f32 v{32+k}, v{32+k}, v{40+k}")
    for k in range(8): e(f"v_add_f32 v{48+k}, v{48+k}, v{56+k}")
    for k in range(8): e(f"v_add_f32 v{32+k}, v{32+k}, v{48+k}")
    for k in range(4): e(f"v_cvt_pk_bf16_f32 v{8+k}, v{32+2*k}, v{33+2*k}")
    e(f"buffer_store_dwordx4 v[8:11], v5, {srd(srdOUT)}, {sT0} offen")
    a.label("L_fin")
    if stamps:
        a._emit("s_waitcnt vmcnt(0)")
        stamp(7)
        a._emit("s_waitcnt lgkmcnt(0)")
        wv = 0 if stamps is True else int(stamps[1:])
        e(f"s_cmp_eq_u32 {sWAVE}, {wv}"); e("s_cbranch_scc0 L_end")
        e(f"s_mov_b32 s{srdWS+2}, 0x10000000")
        e(f"s_lshl_b32 {sT0}, s2, 6"); e(f"s_add_u32 {sT0}, {sT0}, {0x10000000 - 256*64}")
        for k in range(16): e(f"v_mov_b32 v{8+k}, s{STAMP0+k}")
        e("s_mov_b64 exec, 1")
        for k in range(4): e(f"buffer_store_dwordx4 {V(8+4*k,4)}, off, {srd(srdWS)}, {sT0} offset:{16*k}")
    a.label("L_end")
    e("s_endpgm")

    a.label("L_rescale"); a.reset_stream()
    e("s_nop 11")
    e(f"v_mov_b32 v{vT2}, v{vT}")
    e(f"v_permlane32_swap_b32 v{vT}, v{vT2}")
    e(f"v_max3_f32 v{vT}, v{vT}, v{vT2}, v{vM}")
    e(f"v_sub_f32 v{vT2}, v{vM}, v{vT}")
    e(f"v_mul_f32 v{vT2}, {sC}, v{vT2}")
    e(f"v_exp_f32 v{vT2}, v{vT2}")
    e(f"v_mov_b32 v{vM}, v{vT}")
    e(f"v_mul_f32 v{vMC}, {sC}, v{vT}")
    e(f"v_add_f32 v{vTHR}, {sTC}, v{vT}")
    e(f"v_mul_f32 v{vL0}, v{vL0}, v{vT2}"); e(f"v_mul_f32 v{vL1}, v{vL1}, v{vT2}")
    for k in range(64): e(f"v_mul_f32 v{vO+k}, v{vO+k}, v{vT2}")
    e("s_nop 1")
    e(f"s_setpc_b64 {sRET}")
    a.label("L_code_end")
    a.raw('.section .rodata,"a"'); a.raw(".p2align 6"); a.raw(f".amdhsa_kernel {NAME}_kernel")
    for l in ("next_free_vgpr 512", "next_free_sgpr 102", "accum_offset 256", "group_segment_fixed_size 0", "kernarg_size 64",
              "user_sgpr_count 2", "user_sgpr_kernarg_segment_ptr 1", "system_sgpr_workgroup_id_x 1"):
        a.raw("  .amdhsa_" + l)
    a.raw(".end_amdhsa_kernel")
    open(path, "w").write(a.text())
    return a

if __name__ == "__main__":
    gen("k1.s")
    gen("k1s.s", stamps=True)
    gen("k1s3.s", stamps="w3")
```
